```python
import torch

def _softmax(x, axis=-1):
    return torch.softmax(x, dim=axis)
def _gelu(x):
    return torch.nn.functional.gelu(x, approximate="tanh")
def _silu(x):
    return torch.nn.functional.silu(x)
def _sigmoid(x):
    return torch.sigmoid(x)
def _layernorm(x, axis=-1, eps=1e-5):
    m = x.mean(dim=axis, keepdim=True)
    v = x.var(dim=axis, keepdim=True, unbiased=False)
    return (x - m) / torch.sqrt(v + eps)
def _scatter_add(tgt, idx, src, axis=0):
    return tgt.clone().index_add_(axis, idx, src)
def _segment_sum(src, seg, n):
    out = torch.zeros((n,) + src.shape[1:], dtype=src.dtype)
    return out.index_add_(0, seg, src)
def _pad(x, pw):
    flat = tuple(v for pair in reversed(pw) for v in pair)
    return torch.nn.functional.pad(x, flat)

kernel_name = 'concat_heads__sliding_local_dilated__spectral_fnet__prompt'

def setup_inputs():

    _w = (lambda a: (lambda t: t.to(torch.bfloat16) if t.is_floating_point() else t)(torch.as_tensor(a)))
    def _A_setup():
        B, S, D = 1, 2048, 448
        return {
            "x": _w((lambda *s: torch.randn(*s, dtype=torch.bfloat16) * 0.2)(B, S, D)),
            "wqkv": _w((lambda *s: torch.randn(*s, dtype=torch.bfloat16) * 0.8)(D, 3 * D)),
            "wo": _w((lambda *s: torch.randn(*s, dtype=torch.bfloat16) * 0.2)(D, D)),
        }
    _A_in = _A_setup()

    def _B_setup():
        B, S, D = 1, 2048, 448
        ns = torch.arange(S)[:, None] * torch.arange(S)[None, :]
        nd = torch.arange(D)[:, None] * torch.arange(D)[None, :]
        Ws_re = torch.cos(-2.0 * torch.pi * ns / S).to(float)
        Ws_im = torch.sin(-2.0 * torch.pi * ns / S).to(float)
        Wd_re = torch.cos(-2.0 * torch.pi * nd / D).to(float)
        Wd_im = torch.sin(-2.0 * torch.pi * nd / D).to(float)
        return {
            "x": _w((lambda *s: torch.randn(*s, dtype=torch.bfloat16) * 0.05)(B, S, D)),
            "dft_seq_re": _w(Ws_re),
            "dft_seq_im": _w(Ws_im),
            "dft_hid_re": _w(Wd_re),
            "dft_hid_im": _w(Wd_im),
        }
    _B_in = _B_setup()

    return {
        "A_x": _A_in["x"],
        "A_wqkv": _A_in["wqkv"],
        "A_wo": _A_in["wo"],
        "B_x": _B_in["x"],
        "B_dft_seq_re": _B_in["dft_seq_re"],
        "B_dft_seq_im": _B_in["dft_seq_im"],
        "B_dft_hid_re": _B_in["dft_hid_re"],
        "B_dft_hid_im": _B_in["dft_hid_im"],
    }

def reference(A_x, A_wqkv, A_wo, B_x, B_dft_seq_re, B_dft_seq_im, B_dft_hid_re, B_dft_hid_im):
    def _A_ref(x, wqkv, wo):
        B, S, D = x.shape
        H = 16; Dh = D // H
        W, dil = 8, 2
        qkv = (lambda x, *d: x.permute(*d))((x @ wqkv).reshape(B, S, 3, H, Dh), 2, 0, 3, 1, 4)
        q, k, v = qkv[0], qkv[1], qkv[2]
        scale = Dh ** -0.5
        pos = torch.arange(S)
        off = torch.arange(W) * dil
        idx = pos[:, None] - off[None, :]
        mask = idx >= 0
        idx_c = torch.where(mask, idx, 0).reshape(-1)
        kg = k[:, :, idx_c, :].reshape(B, H, S, W, Dh)
        vg = v[:, :, idx_c, :].reshape(B, H, S, W, Dh)
        logits = torch.einsum("bhsd,bhswd->bhsw", q, kg) * scale
        logits = torch.where(mask[None, None, :, :], logits, -1e9)
        attn = _softmax(logits, axis=-1)
        o = torch.einsum("bhsw,bhswd->bhsd", attn, vg)
        return (lambda x, *d: x.permute(*d))(o, 0, 2, 1, 3).reshape(B, S, D) @ wo

    def _B_ref(x, dft_seq_re, dft_seq_im, dft_hid_re, dft_hid_im):
        a = torch.einsum("bsd,ed->bse", x, dft_hid_re)
        b = torch.einsum("bsd,ed->bse", x, dft_hid_im)
        y = torch.einsum("ts,bse->bte", dft_seq_re, a) - torch.einsum("ts,bse->bte", dft_seq_im, b)
        return y

    a = _A_ref(A_x, A_wqkv, A_wo)
    b = _B_ref(B_x, B_dft_seq_re, B_dft_seq_im, B_dft_hid_re, B_dft_hid_im)
    return torch.concatenate([a, b], axis=-1)
```

```python
NAME = "concat_heads__sliding_local_dilated__spectral_fnet__prompt"

HEADER = """; Kernarg layout for this problem (88 bytes, ptrs only, base s[0:1]):
"""

class Asm:
    def __init__(self):
        self.lines = []
        self.uid = 0
    def __call__(self, s):
        for l in s.strip("\n").split("\n"):
            self.lines.append(l if l.strip().endswith(":") else "    " + l.strip())
    def label(self, base="L"):
        self.uid += 1
        return f"{base}_{self.uid}"
    def text(self):
        return "\n".join(self.lines) + "\n"

def kernel_text(label, body, vgpr=256, sgpr=102, accum=256):
    pre = f""".globl {label}
.p2align 8
.type {label},@function
{label}:
"""
    return pre + body

def descriptor(label, vgpr=256, sgpr=102, accum=256, extra=""):
    return f""".p2align 6
.amdhsa_kernel {label}
  .amdhsa_next_free_vgpr {vgpr}
  .amdhsa_next_free_sgpr {sgpr}
  .amdhsa_accum_offset {accum}
  .amdhsa_group_segment_fixed_size 0
  .amdhsa_kernarg_size 88
  .amdhsa_user_sgpr_count 2
  .amdhsa_user_sgpr_kernarg_segment_ptr 1
  .amdhsa_system_sgpr_workgroup_id_x 1
{extra}.end_amdhsa_kernel
"""

def module(kernels, launches, tail=""):
    s = HEADER
    if len(launches) == 1 and launches[0][0] == NAME + "_kernel":
        l, g, b, lds = launches[0]
        s += f"; @launch grid=({g},1,1) block=({b},1,1) lds={lds}\n"
    else:
        for l, g, b, lds in launches:
            s += f"; @launch kernel={l} grid=({g},1,1) block=({b},1,1) lds={lds}\n"
    s += '.amdgcn_target "amdgcn-amd-amdhsa--gfx950"\n.text\n'
    for k in kernels:
        s += kernel_text(k[0], k[1])
    s += tail
    s += '.section .rodata,"a"\n'
    for k in kernels:
        s += descriptor(k[0], *k[2:])
    return s


import re
_RANGE = re.compile(r"^([vas])\[(\d+):(\d+)\]$")
_ONE = re.compile(r"^([vas])(\d+)$")
def _regs(tok):
    tok = tok.strip()
    tok = tok.lstrip("-")
    if tok.startswith("|") and tok.endswith("|"): tok = tok[1:-1]
    if tok.startswith("abs(") : tok = tok[4:-1]
    m = _RANGE.match(tok)
    if m: return {(m.group(1), i) for i in range(int(m.group(2)), int(m.group(3)) + 1)}
    m = _ONE.match(tok)
    if m: return {(m.group(1), int(m.group(2)))}
    if tok == "vcc": return {("s", 106), ("s", 107)}
    if tok == "vcc_lo": return {("s", 106)}
    if tok == "vcc_hi": return {("s", 107)}
    if tok == "m0": return {("s", 124)}
    if tok == "exec": return {("s", 126), ("s", 127)}
    return set()
_TRANS = ("v_exp_f32", "v_log_f32", "v_rcp_f32", "v_rsq_f32", "v_sqrt_f32", "v_sin_f32", "v_cos_f32", "v_rcp_iflag_f32")
def _parse(line):
    s = line.split(";")[0].strip()
    if not s or s.endswith(":") or s.startswith("."): return None
    parts = s.split(None, 1)
    op = parts[0]
    ops = []
    if len(parts) > 1:
        ops = [o.strip() for o in parts[1].split(",")]
        if ops:
            last = ops[-1].split()
            ops[-1] = last[0]
            mods = last[1:]
    else:
        mods = []
    return op, [o.split()[0] if o.split() else o for o in ops], s

def hazard_pass(text):
    out = []
    hist = []
    pos = 0
    for line in text.split("\n"):
        p = _parse(line)
        if p is None:
            out.append(line); continue
        op, ops, s = p
        is_mfma = op.startswith("v_mfma")
        is_valu = op.startswith("v_") and not is_mfma
        is_vmem = op.startswith(("buffer_", "global_", "flat_"))
        is_ds = op.startswith("ds_")
        is_salu = op.startswith("s_")
        R = [_regs(o) for o in ops]
        wr, rd = set(), set()
        lds_dma = is_vmem and re.search(r"\blds\b", s) is not None
        if is_mfma:
            wr = R[0]; rdA = R[1] | R[2]; rdC = R[3] if len(R) > 3 else set(); rd = rdA | rdC
        elif is_valu:
            wr = set(R[0]) if R else set()
            rd = set().union(*R[1:]) if len(R) > 1 else set()
            if op.startswith(("v_add_co", "v_sub_co", "v_addc_co", "v_subb_co", "v_subrev_co")): wr |= R[1]
            if op.startswith(("v_fmac", "v_dot2c", "v_writelane", "v_permlane", "v_pk_fmac")) or "dpp" in op or "sdwa" in op: rd |= R[0]
            if op.startswith("v_permlane") and "swap" in op: wr |= R[1]
            if op.startswith("v_cmpx"): wr |= _regs("exec")
        elif is_vmem:
            if "load" in op and not lds_dma:
                wr = R[0]; rd = set().union(*R[1:])
            else:
                rd = set().union(*R) if R else set()
            if lds_dma: rd |= _regs("m0")
        elif is_ds:
            if op.startswith(("ds_read", "ds_bpermute", "ds_permute", "ds_swizzle")):
                wr = R[0]; rd = set().union(*R[1:])
            else:
                rd = set().union(*R)
        elif is_salu:
            if op.startswith(("s_cmp", "s_cbranch", "s_branch", "s_waitcnt", "s_barrier", "s_nop", "s_sleep", "s_setprio", "s_endpgm", "s_bitcmp")):
                rd = set().union(*R) if R else set()
            else:
                wr = set(R[0]) if R else set()
                rd = set().union(*R[1:]) if len(R) > 1 else set()
        need = 0
        for h in hist:
            gap = pos - h["pos"] - 1
            def req(n):
                nonlocal need
                need = max(need, n - gap)
            hw = h["wr"]
            vw = {r for r in hw if r[0] in "va"}
            sw = {r for r in hw if r[0] == "s"}
            if h["valu"]:
                if is_mfma and vw & rd: req(2)
                if is_valu and op.startswith("v_permlane") and vw & rd: req(2)
                if is_valu and "dpp" in op and vw & rd: req(2)
                if is_valu and op.startswith(("v_readlane", "v_readfirstlane")) and vw & rd: req(1)
                if h["trans"] and (is_valu or is_mfma) and vw & rd: req(1)
                if h["trans"] and (is_vmem or is_ds) and vw & rd: req(1)
                if h["sdwa"] and is_valu and vw & (rd | wr): req(1)
                if sw & rd:
                    if is_valu: req(4 if op.startswith(("v_readlane", "v_writelane")) else 2)
                    if is_vmem: req(5)
                    if is_salu: req(1)
                if sw & _regs("vcc") and op.startswith("s_cbranch_vcc"): req(1)
                if sw & _regs("exec"):
                    if is_mfma or op.startswith(("v_permlane", "v_readlane", "v_readfirstlane", "v_writelane")): req(4)
                    if "dpp" in op: req(5)
                if h["dot"] and vw & (rd | wr) and (is_valu or is_mfma or is_vmem or is_ds): req(3)
            if h["mfma"]:
                n = h["passes"]
                big = {4: 8, 8: 12, 16: 20}[n]
                if is_mfma:
                    if vw & rdA: req(big)
                    if vw & rdC and not (rdC == vw and h["op"] == op): req({4: 6, 8: 10, 16: 18}[n])
                    if vw & wr and not (vw & rdC): req({4: 6, 8: 10, 16: 18}[n])
                elif (is_valu or is_vmem or is_ds) and vw & (rd | wr): req(big)
                if is_valu and h["rdC"] & wr: req({4: 3, 8: 7, 16: 15}[n])
            if h["salu"] and sw & _regs("m0") and lds_dma: req(1)
            if h["widestore"] and h["rd"] & wr: req(2)
        while need > 0:
            k = min(need, 16)
            out.append(f"    s_nop {k-1}")
            pos += k; need -= k
        out.append(line)
        hist.append(dict(pos=pos, wr=wr, rd=rd, valu=is_valu, mfma=is_mfma, salu=is_salu, op=op,
                         trans=op.startswith(_TRANS), sdwa=("sdwa" in op or "op_sel" in s), dot=op.startswith("v_dot"),
                         passes=(8 if "32x32" in op else 4), rdC=(rdC if is_mfma else set()),
                         widestore=(is_vmem and "store" in op and ("x3" in op or "x4" in op))))
        if op == "s_nop":
            pos += int(ops[0], 0) + 1
        else:
            pos += 1
        hist = [h for h in hist if pos - h["pos"] <= 21]
    return "\n".join(out)


class Regs:
    def __init__(self, kind, start, limit):
        self.kind, self.next, self.limit, self.hi = kind, start, limit, start
    def get(self, n=1, align=None):
        if align is None: align = 1 if n == 1 else (2 if self.kind != "s" or n == 2 else 4)
        self.next = -(-self.next // align) * align
        r = self.next; self.next += n
        assert self.next <= self.limit, f"out of {self.kind} registers"
        self.hi = max(self.hi, self.next)
        return r
    def mark(self): return self.next
    def reset(self, m): self.next = m

def vr(r, n=1): return f"v{r}" if n == 1 else f"v[{r}:{r+n-1}]"
def sr(r, n=1): return f"s{r}" if n == 1 else f"s[{r}:{r+n-1}]"
def f32(x):
    import struct
    return hex(struct.unpack("<I", struct.pack("<f", x))[0])
```

```python
import sys, os, math
HERE = os.path.dirname(os.path.abspath(__file__)); sys.path.insert(0, HERE)
from asmlib import *

O_OFF = 0
G_OFF = 4 << 20
MF = "v_mfma_f32_16x16x32_bf16"

def srd(a, d, base, nbytes):
    a(f"s_mov_b32 s{d}, s{base}\ns_mov_b32 s{d+1}, s{base+1}\ns_mov_b32 s{d+2}, {nbytes}\ns_mov_b32 s{d+3}, 0x00020000")

def interleave(main, fill):
    out = []
    n, m = len(main), len(fill)
    k = 0
    for i, x in enumerate(main):
        out.append(x)
        upto = (i + 1) * m // n
        out += fill[k:upto]; k = upto
    return out

def code_prefetch(a, nbytes, V):
    t = V.get(); t2 = V.get()
    a(f"""
    s_getpc_b64 s[40:41]
    s_mov_b32 s42, {nbytes}
    s_mov_b32 s43, 0x00020000
    v_lshlrev_b32 v{t}, 7, v0
    buffer_load_dword v{t2}, v{t}, s[40:43], 0 offen
    """)

def gen_a1(a, V):
    sX, sW, sWS = 12, 16, 20
    sWave, sRb, sHead, sSt = 3, 26, 27, 28
    sXo = 44
    sWo = 50
    sXl, sWl = 53, 54
    t0, t1, t2 = 30, 31, 32
    mPar, mC0, mC1, mFirst = 56, 58, 60, 62
    XBASE = 86016
    L = V.get(); g = V.get(); j = V.get(); tmp = V.get(); tmp2 = V.get()
    vXe, vXo, vW = V.get(), V.get(), V.get()
    vAx = [V.get(), V.get()]
    vAw = [[V.get(), V.get()], [V.get(), V.get()]]
    a(f"""
    s_lshr_b32 s{t0}, s25, 3
    s_lshr_b32 s{t1}, s24, 1
    s_mul_i32 s{sRb}, s{t1}, 3
    s_add_u32 s{sRb}, s{sRb}, s{t0}
    s_and_b32 s{sHead}, s25, 7
    s_lshl_b32 s{t0}, s{t0}, 1
    s_add_u32 s{sSt}, s{t0}, s{sHead}
    s_cmp_ge_u32 s{sSt}, 7
    s_cselect_b32 s{t0}, 7, 0
    s_sub_u32 s{sSt}, s{sSt}, s{t0}
    s_and_b32 s{t1}, s24, 1
    s_lshl_b32 s{t1}, s{t1}, 3
    s_add_u32 s{sHead}, s{sHead}, s{t1}
    v_and_b32 v{L}, 63, v0
    v_lshrrev_b32 v{tmp}, 3, v{L}
    v_mul_u32_u24 v{vXe}, 896, v{tmp}
    v_lshrrev_b32 v{tmp}, 4, v{L}
    v_and_b32 v{tmp2}, 7, v{L}
    v_xor_b32 v{tmp}, v{tmp}, v{tmp2}
    v_lshl_add_u32 v{vXe}, v{tmp}, 4, v{vXe}
    v_xor_b32 v{vXo}, 64, v{vXe}
    v_lshrrev_b32 v{tmp}, 2, v{L}
    v_mul_u32_u24 v{vW}, 2688, v{tmp}
    v_lshrrev_b32 v{tmp}, 5, v{L}
    v_lshlrev_b32 v{tmp}, 1, v{tmp}
    v_and_b32 v{tmp2}, 3, v{L}
    v_xor_b32 v{tmp}, v{tmp}, v{tmp2}
    v_lshl_add_u32 v{vW}, v{tmp}, 4, v{vW}
    s_mul_i32 s{t0}, s{sRb}, 176
    s_mul_i32 s{t1}, s{sWave}, 48
    s_add_u32 s{t0}, s{t0}, s{t1}
    s_sub_u32 s{t0}, s{t0}, 16
    """)
    for n in range(6):
        a(f"s_add_i32 s{t1}, s{t0}, {8*n}\ns_max_i32 s{t1}, s{t1}, 0\ns_min_i32 s{t1}, s{t1}, 2040\ns_mul_i32 s{sXo+n}, s{t1}, 896")
    a(f"s_mul_i32 s{t2}, s{sHead}, 56\ns_mul_i32 s{t0}, s{sWave}, 3")
    for n in range(3):
        a(f"""
        s_lshr_b32 s{t1}, s{t0}, 2
        s_mul_i32 s{t1}, s{t1}, 896
        s_add_u32 s{sWo+n}, s{t1}, s{t2}
        s_and_b32 s{t1}, s{t0}, 3
        s_mul_i32 s{t1}, s{t1}, {16*2688}
        s_add_u32 s{sWo+n}, s{sWo+n}, s{t1}
        s_add_u32 s{t0}, s{t0}, 1
        """)
    a(f"s_mul_i32 s{sXl}, s{sWave}, 18432\ns_add_u32 s{sXl}, s{sXl}, {XBASE}\ns_mul_i32 s{sWl}, s{sWave}, 3072")
    a("s_waitcnt lgkmcnt(0)")
    srd(a, sX, 4, 1835008); srd(a, sW, 6, 1204224); srd(a, sWS, 10, 0x10000000)
    def dma(i):
        r = [f"s_lshl_b32 s{t0}, s{sSt}, 7\ns_mul_i32 s{t2}, s{sSt}, {64*2688}"]
        for n in range(6):
            r.append(f"s_add_u32 m0, s{sXl}, {(i%3)*6144 + n*1024}\ns_add_u32 s{t1}, s{t0}, s{sXo+n}\n"
                     f"buffer_load_dwordx4 v{vXo if n&1 else vXe}, s[{sX}:{sX+3}], s{t1} offen lds")
        for n in range(3):
            r.append(f"s_add_u32 m0, s{sWl}, {i*12288 + n*1024}\ns_add_u32 s{t1}, s{t2}, s{sWo+n}\n"
                     f"buffer_load_dwordx4 v{vW}, s[{sW}:{sW+3}], s{t1} offen lds")
        r.append(f"s_add_u32 s{sSt}, s{sSt}, 1\ns_cmp_eq_u32 s{sSt}, 7\ns_cselect_b32 s{sSt}, 0, s{sSt}")
        return r
    for x in dma(0) + dma(1): a(x)
    mk = [V.get() for _ in range(4)]
    zq = V.get()
    a(f"""
    v_lshrrev_b32 v{g}, 4, v{L}
    v_and_b32 v{j}, 15, v{L}
    v_lshrrev_b32 v{tmp}, 1, v{j}
    v_xor_b32 v{tmp}, v{tmp}, v{g}
    v_lshlrev_b32 v{tmp}, 4, v{tmp}
    v_lshl_add_u32 v{tmp}, v{j}, 7, v{tmp}
    v_add_u32 v{vAx[0]}, s{sXl}, v{tmp}
    v_xor_b32 v{vAx[1]}, 64, v{vAx[0]}
    v_lshrrev_b32 v{tmp}, 2, v{j}
    v_lshl_add_u32 v{tmp}, v{g}, 3, v{tmp}
    v_lshlrev_b32 v{tmp}, 6, v{tmp}
    v_and_b32 v{tmp2}, 3, v{L}
    v_lshl_add_u32 v{tmp}, v{tmp2}, 3, v{tmp}
    v_and_b32 v{tmp2}, 1, v{g}
    v_lshl_add_u32 v{vAw[0][0]}, v{tmp2}, 5, v{tmp}
    v_xor_b32 v{vAw[0][1]}, 32, v{vAw[0][0]}
    v_add_u32 v{vAw[1][0]}, 49152, v{vAw[0][0]}
    v_add_u32 v{vAw[1][1]}, 49152, v{vAw[0][1]}
    v_and_b32 v{tmp}, 1, v{j}
    v_cmp_eq_u32 s[{mPar}:{mPar+1}], 1, v{tmp}
    v_lshl_add_u32 v{tmp}, v{g}, 2, v{tmp}
    v_cmp_le_u32 s[{mC0}:{mC0+1}], v{tmp}, v{j}
    v_add_u32 v{tmp}, 2, v{tmp}
    v_cmp_le_u32 s[{mC1}:{mC1+1}], v{tmp}, v{j}
    v_mov_b32 v{tmp}, 0xffff
    v_mov_b32 v{tmp2}, 0xffff0000
    v_cndmask_b32 v{tmp}, v{tmp}, v{tmp2}, s[{mPar}:{mPar+1}]
    v_cndmask_b32 v{mk[0]}, v{tmp}, 0, s[{mC0}:{mC0+1}]
    v_cndmask_b32 v{mk[1]}, v{tmp}, 0, s[{mC1}:{mC1+1}]
    v_cndmask_b32 v{mk[2]}, 0, v{tmp}, s[{mC0}:{mC0+1}]
    v_cndmask_b32 v{mk[3]}, 0, v{tmp}, s[{mC1}:{mC1+1}]
    v_cmp_gt_u32 vcc, 3, v{g}
    v_cndmask_b32 v{zq}, 0, -1, vcc
    s_add_u32 s{t0}, s{sRb}, s{sWave}
    s_cmp_eq_u32 s{t0}, 0
    s_cselect_b64 s[{mFirst}:{mFirst+1}], -1, 0
    """)
    acc = [[[V.get(4) for ct in range(2)] for t in range(3)] for p in range(3)]
    fx = [[V.get(4) for t in range(3)] for b in range(2)]
    fw = [[[V.get(4) for ct in range(2)] for p in range(3)] for b in range(2)]
    def reads(n):
        i, ks, b = n >> 1, n & 1, n & 1
        r = []
        for t in range(3):
            r.append(f"ds_read_b128 {vr(fx[b][t],4)}, v{vAx[ks]} offset:{(i%3)*6144 + t*2048}")
        hi = 1 if i >= 4 else 0
        for p in range(3):
            for ct in range(2):
                for hh in range(2):
                    r.append(f"ds_read_b64_tr_b16 {vr(fw[b][p][ct]+2*hh,2)}, v{vAw[hi][ct]} offset:{i*12288 - hi*49152 + p*4096 + ks*2048 + hh*256}")
        return r
    def mfmas(n):
        b = n & 1
        r = []
        for p in range(3):
            for ct in range(2):
                for t in range(3):
                    A, B = (fw[b][p][ct], fx[b][t]) if p < 2 else (fx[b][t], fw[b][p][ct])
                    c = vr(acc[p][t][ct], 4) if n else "0"
                    r.append(f"{MF} {vr(acc[p][t][ct],4)}, {vr(A,4)}, {vr(B,4)}, {c}")
        return r
    a("s_waitcnt vmcnt(9)\ns_barrier")
    for x in reads(0): a(x)
    for n in range(14):
        i = n >> 1
        fill = []
        a("s_waitcnt lgkmcnt(0)")
        if n & 1:
            if n < 13:
                a(f"s_waitcnt vmcnt({9 if i+2 <= 6 else 0})\ns_barrier")
        if n < 13: fill += reads(n + 1)
        if not (n & 1) and i + 2 <= 6: fill += dma(i + 2)
        for x in interleave(mfmas(n), fill): a(x)
    Q = [fx[0][t] for t in range(3)]
    K = [V.get(4)] + [fx[1][t] for t in range(3)]
    Vp = [V.get(8), V.get(8)]
    def cvt(d, s): a(f"v_cvt_pk_bf16_f32 v{d}, v{s}, v{s+1}\nv_cvt_pk_bf16_f32 v{d+1}, v{s+2}, v{s+3}")
    sh = V.get()
    a(f"v_lshlrev_b32 v{sh}, 4, v{L}\nv_add_u32 v{tmp}, s{sXl}, v{sh}")
    for ct in range(2): cvt(K[3] + 2*ct, acc[1][2][ct])
    for ct in range(2): cvt(Vp[ct] + 6, acc[2][2][ct])
    a(f"""
    ds_write_b128 v{tmp}, {vr(K[3],4)}
    ds_write_b64 v{tmp}, {vr(Vp[0]+6,2)} offset:1024
    ds_write_b64 v{tmp}, {vr(Vp[1]+6,2)} offset:1032
    """)
    for t in range(3):
        for ct in range(2):
            cvt(Q[t] + 2*ct, acc[0][t][ct])
            if t < 2:
                cvt(K[t+1] + 2*ct, acc[1][t][ct]); cvt(Vp[ct] + 2 + 2*t, acc[2][t][ct])
        a(f"v_and_b32 v{Q[t]+2}, v{zq}, v{Q[t]+2}\nv_and_b32 v{Q[t]+3}, v{zq}, v{Q[t]+3}")
    a(f"""
    s_sub_u32 s{t0}, s{sXl}, 18432
    s_max_u32 s{t0}, s{t0}, {XBASE}
    v_add_u32 v{tmp}, s{t0}, v{sh}
    s_waitcnt lgkmcnt(0)
    s_barrier
    ds_read_b128 {vr(K[0],4)}, v{tmp}
    ds_read_b64 {vr(Vp[0],2)}, v{tmp} offset:1024
    ds_read_b64 {vr(Vp[1],2)}, v{tmp} offset:1032
    """)
    Sp = [acc[0][t][0] for t in range(3)]; Sc = [acc[0][t][1] for t in range(3)]
    for t in (2, 1):
        a(f"{MF} {vr(Sp[t],4)}, {vr(K[t],4)}, {vr(Q[t],4)}, 0\n{MF} {vr(Sc[t],4)}, {vr(K[t+1],4)}, {vr(Q[t],4)}, 0")
    a(f"{MF} {vr(Sc[0],4)}, {vr(K[1],4)}, {vr(Q[0],4)}, 0\ns_waitcnt lgkmcnt(0)\n{MF} {vr(Sp[0],4)}, {vr(K[0],4)}, {vr(Q[0],4)}, 0")
    cexp = 28 ** -0.5 * math.log2(math.e)
    a(f"s_mov_b32 s{t2}, {f32(cexp)}")
    neg = V.get()
    a(f"v_mov_b32 v{neg}, 0xf149f2ca")
    T3 = (2, 1, 0)
    v0_ = {t: acc[1][t][0] for t in T3}; v1_ = {t: acc[1][t][0]+1 for t in T3}
    mx = {t: acc[1][t][0]+2 for t in T3}; my = {t: acc[1][t][0]+3 for t in T3}
    P = {t: acc[1][t][1] for t in T3}
    for t in T3:
        a(f"""
        v_cndmask_b32 v{Sp[t]}, v{Sp[t]}, v{Sp[t]+1}, s[{mPar}:{mPar+1}]
        v_cndmask_b32 v{Sp[t]+2}, v{Sp[t]+2}, v{Sp[t]+3}, s[{mPar}:{mPar+1}]
        v_cndmask_b32 v{Sc[t]}, v{Sc[t]}, v{Sc[t]+1}, s[{mPar}:{mPar+1}]
        v_cndmask_b32 v{Sc[t]+2}, v{Sc[t]+2}, v{Sc[t]+3}, s[{mPar}:{mPar+1}]
        """)
        if t == 1:
            a(f"v_cndmask_b32 v{Sp[t]}, v{Sp[t]}, v{neg}, s[{mFirst}:{mFirst+1}]\nv_cndmask_b32 v{Sp[t]+2}, v{Sp[t]+2}, v{neg}, s[{mFirst}:{mFirst+1}]")
        a(f"""
        v_cndmask_b32 v{v0_[t]}, v{Sp[t]}, v{Sc[t]}, s[{mC0}:{mC0+1}]
        v_cndmask_b32 v{v1_[t]}, v{Sp[t]+2}, v{Sc[t]+2}, s[{mC1}:{mC1+1}]
        v_max_f32 v{mx[t]}, v{v0_[t]}, v{v1_[t]}
        """)
    def xreduce(op):
        for sw in ("v_permlane16_swap_b32", "v_permlane32_swap_b32"):
            for t in T3: a(f"v_mov_b32 v{my[t]}, v{mx[t]}")
            for t in T3: a(f"{sw} v{mx[t]}, v{my[t]}")
            for t in T3: a(f"{op} v{mx[t]}, v{mx[t]}, v{my[t]}")
    xreduce("v_max_f32")
    for t in T3:
        a(f"v_sub_f32 v{v0_[t]}, v{v0_[t]}, v{mx[t]}\nv_sub_f32 v{v1_[t]}, v{v1_[t]}, v{mx[t]}")
        a(f"v_mul_f32 v{v0_[t]}, s{t2}, v{v0_[t]}\nv_mul_f32 v{v1_[t]}, s{t2}, v{v1_[t]}")
        a(f"v_exp_f32 v{v0_[t]}, v{v0_[t]}\nv_exp_f32 v{v1_[t]}, v{v1_[t]}")
    for t in T3: a(f"v_add_f32 v{mx[t]}, v{v0_[t]}, v{v1_[t]}")
    xreduce("v_add_f32")
    for t in T3: a(f"v_rcp_f32 v{mx[t]}, v{mx[t]}")
    for t in T3:
        a(f"""
        v_mul_f32 v{v0_[t]}, v{v0_[t]}, v{mx[t]}
        v_mul_f32 v{v1_[t]}, v{v1_[t]}, v{mx[t]}
        v_cvt_pk_bf16_f32 v{v0_[t]}, v{v0_[t]}, v{v0_[t]}
        v_cvt_pk_bf16_f32 v{v1_[t]}, v{v1_[t]}, v{v1_[t]}
        v_and_b32 v{P[t]}, v{mk[0]}, v{v0_[t]}
        v_and_b32 v{P[t]+1}, v{mk[1]}, v{v1_[t]}
        v_and_b32 v{P[t]+2}, v{mk[2]}, v{v0_[t]}
        v_and_b32 v{P[t]+3}, v{mk[3]}, v{v1_[t]}
        """)
    for t in T3:
        for ct in range(2):
            a(f"{MF} {vr(acc[2][t][ct],4)}, {vr(Vp[ct]+2*t,4)}, {vr(P[t],4)}, 0")
    a(f"""
    s_mul_i32 s{t0}, s{sRb}, 11
    s_mul_i32 s{t1}, s{sWave}, 3
    s_add_u32 s{t0}, s{t0}, s{t1}
    s_add_u32 s{t0}, s{t0}, 1
    s_lshl_b32 s{t0}, s{t0}, 4
    s_add_u32 s{t0}, s{t0}, s{sHead}
    s_lshl_b32 s{t0}, s{t0}, 10
    s_add_u32 s{t0}, s{t0}, {O_OFF}
    """)
    for t in T3:
        for ct in range(2): cvt(Q[t] + 2*ct, acc[2][t][ct])
        a(f"v_and_b32 v{Q[t]+2}, v{zq}, v{Q[t]+2}\nv_and_b32 v{Q[t]+3}, v{zq}, v{Q[t]+3}")
        if t == 0: a(f"s_cmp_eq_u32 s{sWave}, 0\ns_cbranch_scc1 K1_end")
        a(f"buffer_store_dwordx4 {vr(Q[t],4)}, v{sh}, s[{sWS}:{sWS+3}], s{t0} offen")
        a(f"s_sub_u32 s{t0}, s{t0}, 16384")
    a("s_endpgm")

def gen_b1(a, V):
    sX, sWS = 12, 20
    sWave, sS2, sHalf = 3, 26, 27
    t0, t1 = 30, 31
    L, g, j, tmp, tmp2, o16 = [V.get() for _ in range(6)]
    a(f"""
    s_lshl_b32 s{t0}, s24, 3
    s_add_u32 s{t0}, s{t0}, s25
    s_sub_u32 s{t0}, s{t0}, 24
    s_lshr_b32 s{sS2}, s{t0}, 1
    s_and_b32 s{sHalf}, s{t0}, 1
    s_lshl_b32 s{t1}, s{sHalf}, 3
    v_and_b32 v{o16}, 7, v0
    v_add_u32 v{o16}, s{t1}, v{o16}
    v_lshlrev_b32 v{o16}, 4, v{o16}
    """)
    ad = [[V.get() for _ in range(4)] for it in range(2)]
    for it in range(2):
        A_, B_, C_, D_ = ad[it]
        a(f"""
        v_lshrrev_b32 v{tmp}, 3, v0
        v_lshlrev_b32 v{tmp}, 5, v{tmp}
        v_add_u32 v{tmp}, s{sS2}, v{tmp}
        v_add_u32 v{tmp}, {1024*it}, v{tmp}
        v_sub_u32 v{tmp2}, 2048, v{tmp}
        v_and_b32 v{tmp2}, 2047, v{tmp2}
        v_mul_u32_u24 v{tmp}, 896, v{tmp}
        v_mul_u32_u24 v{tmp2}, 896, v{tmp2}
        v_add_u32 v{A_}, v{tmp}, v{o16}
        v_sub_u32 v{C_}, v{tmp}, v{o16}
        v_add_u32 v{C_}, 432, v{C_}
        v_add_u32 v{D_}, v{tmp2}, v{o16}
        v_sub_u32 v{B_}, v{tmp2}, v{o16}
        v_add_u32 v{B_}, 880, v{B_}
        """)
    a("s_waitcnt lgkmcnt(0)")
    srd(a, sX, 8, 1835008); srd(a, sWS, 10, 0x10000000)
    raw = [[V.get(4) for _ in range(4)] + [V.get(), V.get()] for it in range(2)]
    for it in range(2):
        A_, B_, C_, D_ = ad[it]; r = raw[it]
        a(f"""
        buffer_load_dwordx4 {vr(r[0],4)}, v{A_}, s[{sX}:{sX+3}], 0 offen
        buffer_load_dwordx4 {vr(r[2],4)}, v{C_}, s[{sX}:{sX+3}], 0 offen
        buffer_load_dword v{r[5]}, v{C_}, s[{sX}:{sX+3}], 0 offen offset:16
        buffer_load_dwordx4 {vr(r[1],4)}, v{B_}, s[{sX}:{sX+3}], 0 offen
        buffer_load_dword v{r[4]}, v{B_}, s[{sX}:{sX+3}], 0 offen offset:16
        buffer_load_dwordx4 {vr(r[3],4)}, v{D_}, s[{sX}:{sX+3}], 0 offen offset:448
        """)
    F = [V.get(4), V.get(4)]
    dl, a0 = V.get(), V.get()
    cs = V.get(8)
    a(f"""
    v_and_b32 v{L}, 63, v0
    v_lshrrev_b32 v{g}, 4, v{L}
    v_and_b32 v{j}, 15, v{L}
    s_lshl_b32 s{t0}, s{sWave}, 3
    v_lshrrev_b32 v{tmp}, 1, v{j}
    v_add_u32 v{tmp}, s{t0}, v{tmp}
    v_and_b32 v{tmp2}, 1, v{j}
    v_cvt_f32_u32 v{a0}, v{tmp2}
    v_mul_f32 v{a0}, 0x3e800000, v{a0}
    v_lshl_add_u32 v{tmp2}, v{tmp}, 1, v{tmp2}
    v_cmp_eq_u32 vcc, 1, v{tmp2}
    v_cndmask_b32 v{tmp}, v{tmp}, 32, vcc
    v_cndmask_b32 v{a0}, v{a0}, 0, vcc
    v_cvt_f32_u32 v{dl}, v{tmp}
    v_mul_f32 v{dl}, 0x3c800000, v{dl}
    v_lshlrev_b32 v{tmp}, 3, v{g}
    v_cvt_f32_u32 v{tmp}, v{tmp}
    v_fma_f32 v{a0}, v{dl}, v{tmp}, v{a0}
    """)
    for ks in range(2):
        for m in range(8):
            a(f"v_fmamk_f32 v{cs+m}, v{dl}, {f32(32*ks+m)}, v{a0}")
        for m in range(8): a(f"v_cos_f32 v{cs+m}, v{cs+m}")
        for m in range(4): a(f"v_cvt_pk_bf16_f32 v{F[ks]+m}, v{cs+2*m}, v{cs+2*m+1}")
    wa, ra = V.get(), V.get()
    a(f"""
    v_lshrrev_b32 v{tmp}, 3, v0
    v_and_b32 v{tmp2}, 3, v{tmp}
    v_lshrrev_b32 v{wa}, 1, v{tmp}
    v_and_b32 v{wa}, 4, v{wa}
    v_or_b32 v{tmp2}, v{tmp2}, v{wa}
    v_and_b32 v{wa}, 7, v0
    v_xor_b32 v{tmp2}, v{tmp2}, v{wa}
    v_lshlrev_b32 v{tmp2}, 5, v{tmp2}
    v_lshl_add_u32 v{wa}, v{tmp}, 8, v{tmp2}
    v_lshrrev_b32 v{tmp}, 2, v{j}
    v_and_b32 v{tmp2}, 1, v{g}
    v_lshl_or_b32 v{tmp2}, v{tmp2}, 2, v{tmp}
    v_lshl_add_u32 v{tmp}, v{g}, 3, v{tmp}
    v_lshlrev_b32 v{tmp}, 8, v{tmp}
    v_lshl_add_u32 v{tmp}, v{tmp2}, 5, v{tmp}
    v_and_b32 v{tmp2}, 3, v{L}
    v_lshl_add_u32 v{ra}, v{tmp2}, 3, v{tmp}
    v_cmp_eq_u32 vcc, 0, v{o16}
    """)
    u1, u2, e = V.get(8), V.get(8), V.get()
    outp = V.get(8)
    def unp(d, base, idx):
        if idx & 1: a(f"v_and_b32 v{d}, 0xffff0000, v{base + (idx>>1)}")
        else: a(f"v_lshlrev_b32 v{d}, 16, v{base + (idx>>1)}")
    for it in range(2):
        r = raw[it]
        a(f"s_waitcnt vmcnt({6*(1-it)})")
        a(f"v_cndmask_b32 v{r[4]}, v{r[4]}, v{r[0]}, vcc")
        for jj in range(8):
            unp(u1+jj, r[0], jj)
            if jj == 0: unp(e, r[4], 0)
            else: unp(e, r[1], 8-jj)
            a(f"v_add_f32 v{u1+jj}, v{u1+jj}, v{e}")
            unp(u2+jj, r[3], jj)
            if jj == 0: unp(e, r[5], 0)
            else: unp(e, r[2], 8-jj)
            a(f"v_add_f32 v{u2+jj}, v{u2+jj}, v{e}")
        for jj in range(8):
            a(f"v_add_f32 v{cs+jj}, v{u1+jj}, v{u2+jj}\nv_sub_f32 v{u1+jj}, v{u1+jj}, v{u2+jj}")
        for sg, src in ((0, cs), (1, u1)):
            for par in range(2):
                for h in range(2):
                    a(f"v_cvt_pk_bf16_f32 v{outp+4*sg+2*par+h}, v{src+4*h+par}, v{src+4*h+2+par}")
        a(f"ds_write_b128 v{wa}, {vr(outp,4)} offset:{8192*it}\nds_write_b128 v{wa}, {vr(outp+4,4)} offset:{8192*it+16}")
        if it == 0: a("s_waitcnt lgkmcnt(0)")
    a("s_waitcnt lgkmcnt(0)\ns_barrier")
    fr = [[V.get(4) for ks in range(2)] for ol in range(8)]
    ac = [V.get(4) for ol in range(8)]
    for ol in range(8):
        a(f"v_xor_b32 v{tmp}, {32*ol}, v{ra}")
        for ks in range(2):
            for hh in range(2):
                a(f"ds_read_b64_tr_b16 {vr(fr[ol][ks]+2*hh,2)}, v{tmp} offset:{8192*ks+1024*hh}")
        if ol % 2 == 1: a("s_waitcnt lgkmcnt(4)") if False else None
    a(f"""
    v_lshrrev_b32 v{tmp}, 1, v{j}
    v_lshlrev_b32 v{tmp}, 15, v{tmp}
    v_lshl_add_u32 v{tmp}, v{g}, 5, v{tmp}
    v_and_b32 v{tmp2}, 1, v{j}
    v_lshl_add_u32 v{tmp}, v{tmp2}, 4, v{tmp}
    s_lshl_b32 s{t0}, s{sWave}, 18
    s_lshl_b32 s{t1}, s{sS2}, 10
    s_add_u32 s{t0}, s{t0}, s{t1}
    s_lshl_b32 s{t1}, s{sHalf}, 9
    s_add_u32 s{t0}, s{t0}, s{t1}
    s_add_u32 s{t0}, s{t0}, {G_OFF}
    s_waitcnt lgkmcnt(0)
    """)
    for ks in range(2):
        for ol in range(8):
            a(f"{MF} {vr(ac[ol],4)}, {vr(fr[ol][ks],4)}, {vr(F[ks],4)}, {vr(ac[ol],4) if ks else 0}")
    for cl in range(4):
        d = fr[cl][0]
        for T in range(2):
            s = ac[2*cl+T]
            a(f"v_cvt_pk_bf16_f32 v{d+2*T}, v{s}, v{s+1}\nv_cvt_pk_bf16_f32 v{d+2*T+1}, v{s+2}, v{s+3}")
        a(f"buffer_store_dwordx4 {vr(d,4)}, v{tmp}, s[{sWS}:{sWS+3}], s{t0} offen offset:{128*cl}")
    a("s_endpgm")

def gen_k1():
    a = Asm(); V = Regs("v", 1, 256)
    a("""
    s_load_dwordx4 s[4:7], s[0:1], 0
    s_load_dwordx2 s[8:9], s[0:1], 24
    s_load_dwordx2 s[10:11], s[0:1], 80
    s_cmp_ge_u32 s2, 256
    s_cbranch_scc1 K1_end
    """)
    code_prefetch(a, 16384, V)
    t = V.get()
    a(f"""
    v_lshrrev_b32 v{t}, 6, v0
    v_readfirstlane_b32 s3, v{t}
    s_and_b32 s24, s2, 7
    s_lshr_b32 s25, s2, 3
    s_cmp_ge_u32 s25, 24
    s_cbranch_scc1 K1_b1
    """)
    m = V.mark()
    gen_a1(a, V)
    a("K1_b1:")
    V.reset(m)
    gen_b1(a, V)
    a("K1_end:\ns_endpgm")
    return hazard_pass(a.text()), V.hi

def gen_a2(a, V):
    sWo, sWS, sOut = 12, 16, 20
    sWave, sRb, sJ = 3, 26, 27
    t0, t1 = 30, 31
    L, g, j, tmp, tmp2, vD, sh = [V.get() for _ in range(7)]
    a(f"""
    v_and_b32 v{L}, 63, v0
    v_lshrrev_b32 v{tmp}, 3, v{L}
    v_mul_u32_u24 v{vD}, 896, v{tmp}
    v_and_b32 v{tmp}, 6, v{tmp}
    v_and_b32 v{tmp2}, 7, v{L}
    v_xor_b32 v{tmp}, v{tmp}, v{tmp2}
    v_lshl_add_u32 v{vD}, v{tmp}, 4, v{vD}
    v_lshlrev_b32 v{sh}, 4, v{L}
    s_lshl_b32 s{t0}, s{sJ}, 7
    s_mul_i32 s{t1}, s{sWave}, {8*896}
    s_add_u32 s{t0}, s{t0}, s{t1}
    s_lshl_b32 s{t1}, s{sWave}, 10
    s_mov_b32 m0, s{t1}
    s_waitcnt lgkmcnt(0)
    """)
    srd(a, sWo, 4, 401408); srd(a, sWS, 10, 0x10000000); srd(a, sOut, 8, 3670016)
    for n in range(14):
        a(f"buffer_load_dwordx4 v{vD}, s[{sWo}:{sWo+3}], s{t0} offen lds\ns_add_u32 s{t0}, s{t0}, {32*896}\ns_add_u32 m0, m0, 4096")
    fo = [V.get(4) for h in range(16)]
    a(f"s_lshl_b32 s{t0}, s{sRb}, 2\ns_add_u32 s{t0}, s{t0}, s{sWave}\ns_lshl_b32 s{t0}, s{t0}, 14\ns_add_u32 s{t0}, s{t0}, {O_OFF}")
    for h in range(16):
        a(f"buffer_load_dwordx4 {vr(fo[h],4)}, v{sh}, s[{sWS}:{sWS+3}], s{t0} offen offset:{(h&3)*1024}")
        if h & 3 == 3: a(f"s_add_u32 s{t0}, s{t0}, 4096")
    z = V.get(4)
    ra = [V.get() for ct in range(4)]
    wa, rb_, so = V.get(), V.get(), V.get()
    EP = 58368
    a(f"""
    v_mov_b32 v{z}, 0
    v_mov_b32 v{z+1}, 0
    v_mov_b32 v{z+2}, 0
    v_mov_b32 v{z+3}, 0
    ds_write_b128 v{sh}, {vr(z,4)} offset:57344
    v_lshrrev_b32 v{g}, 4, v{L}
    v_and_b32 v{j}, 15, v{L}
    v_lshrrev_b32 v{tmp}, 2, v{L}
    v_lshrrev_b32 v{tmp2}, 1, v{tmp}
    v_and_b32 v{tmp2}, 3, v{tmp2}
    v_lshlrev_b32 v{tmp2}, 5, v{tmp2}
    v_lshl_add_u32 v{tmp}, v{tmp}, 7, v{tmp2}
    v_and_b32 v{tmp2}, 3, v{L}
    v_lshl_add_u32 v{ra[0]}, v{tmp2}, 3, v{tmp}
    v_xor_b32 v{ra[1]}, 32, v{ra[0]}
    v_xor_b32 v{ra[2]}, 64, v{ra[0]}
    v_xor_b32 v{ra[3]}, 96, v{ra[0]}
    s_lshl_b32 s{t1}, s{sWave}, 11
    s_add_u32 s{t1}, s{t1}, {EP}
    v_lshrrev_b32 v{tmp}, 1, v{g}
    v_and_b32 v{tmp2}, 7, v{j}
    v_xor_b32 v{tmp}, v{tmp}, v{tmp2}
    v_lshlrev_b32 v{tmp}, 4, v{tmp}
    v_lshl_add_u32 v{tmp}, v{j}, 7, v{tmp}
    v_and_b32 v{tmp2}, 1, v{g}
    v_lshl_add_u32 v{tmp}, v{tmp2}, 3, v{tmp}
    v_add_u32 v{wa}, s{t1}, v{tmp}
    v_lshrrev_b32 v{tmp}, 3, v{L}
    v_and_b32 v{tmp2}, 7, v{L}
    v_mul_u32_u24 v{so}, 1792, v{tmp}
    v_lshl_add_u32 v{so}, v{tmp2}, 4, v{so}
    v_xor_b32 v{tmp2}, v{tmp2}, v{tmp}
    v_lshlrev_b32 v{tmp2}, 4, v{tmp2}
    v_lshl_add_u32 v{tmp}, v{tmp}, 7, v{tmp2}
    v_add_u32 v{rb_}, s{t1}, v{tmp}
    s_waitcnt vmcnt(16) lgkmcnt(0)
    s_barrier
    """)
    fw = [[V.get(4) for ct in range(4)] for b in range(2)]
    acc = [V.get(4) for ct in range(4)]
    def reads(h):
        return [f"ds_read_b64_tr_b16 {vr(fw[h&1][ct]+2*hh,2)}, v{ra[ct ^ (2*(h&1))]} offset:{3584*h + 2048*hh}" for ct in range(4) for hh in range(2)]
    for x in reads(0): a(x)
    for h in range(16):
        a(f"s_waitcnt vmcnt({15-h}) lgkmcnt(0)")
        mm = [f"{MF} {vr(acc[ct],4)}, {vr(fw[h&1][ct],4)}, {vr(fo[h],4)}, {vr(acc[ct],4) if h else 0}" for ct in range(4)]
        for x in interleave(mm, reads(h+1) if h < 15 else []): a(x)
    pk = V.get(8)
    for ct in range(4):
        a(f"v_cvt_pk_bf16_f32 v{pk+2*ct}, v{acc[ct]}, v{acc[ct]+1}\nv_cvt_pk_bf16_f32 v{pk+2*ct+1}, v{acc[ct]+2}, v{acc[ct]+3}")
        a(f"v_xor_b32 v{tmp}, {32*ct}, v{wa}\nds_write_b64 v{tmp}, {vr(pk+2*ct,2)}")
    a(f"""
    s_lshl_b32 s{t0}, s{sRb}, 2
    s_add_u32 s{t0}, s{t0}, s{sWave}
    s_mul_i32 s{t0}, s{t0}, {16*1792}
    s_lshl_b32 s{t1}, s{sJ}, 7
    s_add_u32 s{t0}, s{t0}, s{t1}
    s_add_u32 s{t1}, s{t0}, {8*1792}
    s_waitcnt lgkmcnt(0)
    ds_read_b128 {vr(acc[0],4)}, v{rb_}
    ds_read_b128 {vr(acc[1],4)}, v{rb_} offset:1024
    s_waitcnt lgkmcnt(1)
    buffer_store_dwordx4 {vr(acc[0],4)}, v{so}, s[{sOut}:{sOut+3}], s{t0} offen
    s_waitcnt lgkmcnt(0)
    buffer_store_dwordx4 {vr(acc[1],4)}, v{so}, s[{sOut}:{sOut+3}], s{t1} offen
    s_endpgm
    """)

def gen_b2(a, V):
    sWS, sOut = 16, 20
    sWave, sT1, sBeta = 3, 26, 27
    t0, t1, sSig, sPar, sTb1, sSgn = 30, 31, 32, 33, 34, 35
    L, g, j, tmp, tmp2, sh = [V.get() for _ in range(6)]
    a(f"""
    v_and_b32 v{L}, 63, v0
    v_lshlrev_b32 v{sh}, 4, v{L}
    s_lshl_b32 s{t0}, s{sT1}, 15
    s_lshl_b32 s{t1}, s{sWave}, 13
    s_add_u32 s{t0}, s{t0}, s{t1}
    s_add_u32 s{t0}, s{t0}, {G_OFF}
    s_waitcnt lgkmcnt(0)
    """)
    srd(a, sWS, 10, 0x10000000); srd(a, sOut, 8, 3670016)
    raw = [V.get(4) for n in range(8)]
    for n in range(8):
        a(f"buffer_load_dwordx4 {vr(raw[n],4)}, v{sh}, s[{sWS}:{sWS+3}], s{t0} offen offset:{(n&3)*1024}")
        if n == 3: a(f"s_add_u32 s{t0}, s{t0}, 4096")
    CF = [[V.get(4) for st in range(2)] for X in range(2)]
    cs = V.get(8); dl, a0, w00, w10, w1x, mz = [V.get() for _ in range(6)]
    a(f"""
    s_lshr_b32 s{sSig}, s{sWave}, 1
    s_and_b32 s{sPar}, s{sWave}, 1
    v_lshrrev_b32 v{g}, 4, v{L}
    v_and_b32 v{j}, 15, v{L}
    s_cmp_eq_u32 s{sPar}, 0
    s_cselect_b32 s{t0}, 0.5, 1.0
    s_cselect_b32 s{t1}, 0.5, 0
    v_mov_b32 v{tmp}, s{t0}
    v_mov_b32 v{tmp2}, s{t1}
    v_cmp_eq_u32 vcc, 0, v{g}
    v_cndmask_b32 v{w00}, 1.0, v{tmp}, vcc
    v_cmp_eq_u32 vcc, 3, v{g}
    v_cndmask_b32 v{w10}, 1.0, v{tmp2}, vcc
    v_cndmask_b32 v{w1x}, 1.0, 0, vcc
    v_cndmask_b32 v{mz}, -1, 0, vcc
    """)
    for X in range(2):
        a(f"s_lshl_b32 s{t0}, s{sBeta}, 5")
        if X == 0: a(f"s_add_u32 s{t0}, s{t0}, s{sSig}")
        else: a(f"s_add_u32 s{t0}, s{t0}, 1\ns_sub_u32 s{t0}, s{t0}, s{sSig}")
        a(f"""
        v_lshl_add_u32 v{tmp}, v{j}, 1, s{t0}
        v_cvt_f32_u32 v{dl}, v{tmp}
        v_mul_f32 v{dl}, {f32(1/448)}, v{dl}
        v_lshl_add_u32 v{tmp}, v{g}, 4, s{sPar}
        v_cvt_f32_u32 v{tmp}, v{tmp}
        v_mul_f32 v{a0}, v{dl}, v{tmp}
        """)
        for st in range(2):
            for m in range(8): a(f"v_fmamk_f32 v{cs+m}, v{dl}, {f32(64*st+2*m)}, v{a0}")
            for m in range(8): a(f"{'v_sin_f32' if X else 'v_cos_f32'} v{cs+m}, v{cs+m}")
            if st == 0: a(f"v_mul_f32 v{cs}, v{cs}, v{w00}")
            else: a(f"v_mul_f32 v{cs}, v{cs}, v{w10}\nv_mul_f32 v{cs+1}, v{cs+1}, v{w1x}")
            for m in range(4): a(f"v_cvt_pk_bf16_f32 v{CF[X][st]+m}, v{cs+2*m}, v{cs+2*m+1}")
            if st == 1:
                for m in range(1, 4): a(f"v_and_b32 v{CF[X][st]+m}, v{mz}, v{CF[X][st]+m}")
    wa = V.get()
    a(f"""
    v_and_b32 v{tmp}, 7, v{L}
    v_mul_u32_u24 v{tmp}, 4112, v{tmp}
    v_lshrrev_b32 v{tmp2}, 3, v{L}
    v_lshl_add_u32 v{tmp}, v{tmp2}, 8, v{tmp}
    s_lshl_b32 s{t0}, s{sSig}, 11
    s_lshl_b32 s{t1}, s{sPar}, 7
    s_add_u32 s{t0}, s{t0}, s{t1}
    v_add_u32 v{wa}, s{t0}, v{tmp}
    """)
    for n in range(8):
        a(f"s_waitcnt vmcnt({7-n})\nds_write_b128 v{wa}, {vr(raw[n],4)} offset:{16*n}")
    Pre = [V.get(4) for tt in range(2)]; Pim = [V.get(4) for tt in range(2)]
    Qre = [V.get(4) for tt in range(2)]; Qim = [V.get(4) for tt in range(2)]
    Xo = V.get(4); c2 = V.get(8)
    a(f"s_add_u32 s{sTb1}, s{sT1}, 1024\ns_cmp_eq_u32 s{sT1}, 0\ns_cselect_b32 s{sTb1}, 32, s{sTb1}")
    for tt in range(2):
        a(f"""
        v_lshl_add_u32 v{tmp}, v{j}, 6, s{sTb1 if tt else sT1}
        v_cvt_f32_u32 v{dl}, v{tmp}
        v_mul_f32 v{dl}, {f32(1/2048)}, v{dl}
        v_lshlrev_b32 v{tmp}, 2, v{g}
        v_cvt_f32_u32 v{tmp}, v{tmp}
        v_mul_f32 v{a0}, v{dl}, v{tmp}
        """)
        for m in range(8): a(f"v_fmamk_f32 v{cs+m}, v{dl}, {f32(16*(m>>2)+(m&3))}, v{a0}")
        for m in range(8): a(f"v_sin_f32 v{c2+m}, v{cs+m}\nv_cos_f32 v{cs+m}, v{cs+m}")
        for m in range(4):
            a(f"""
            v_cvt_pk_bf16_f32 v{Pre[tt]+m}, v{cs+2*m}, v{cs+2*m+1}
            v_cvt_pk_bf16_f32 v{Pim[tt]+m}, v{c2+2*m}, v{c2+2*m+1}
            v_mov_b32 v{Qim[tt]+m}, v{Pre[tt]+m}
            v_xor_b32 v{Qre[tt]+m}, 0x80008000, v{Pim[tt]+m}
            """)
    EX = 33024
    ea, eq0 = V.get(), V.get()
    a(f"""
    v_lshrrev_b32 v{tmp}, 1, v{j}
    v_and_b32 v{tmp}, 3, v{tmp}
    v_xor_b32 v{tmp}, v{tmp}, v{g}
    v_lshl_add_u32 v{tmp}, v{j}, 2, v{tmp}
    v_lshlrev_b32 v{tmp}, 4, v{tmp}
    s_lshl_b32 s{t0}, s{sWave}, 11
    v_add_u32 v{ea}, s{t0}, v{tmp}
    v_xor_b32 v{eq0}, 4096, v{ea}
    """)
    eq1 = V.get()
    a(f"v_mov_b32 v{eq1}, v{eq0}")
    for m in range(4): a(f"v_mov_b32 v{Xo+m}, 0")
    a(f"s_cmp_lg_u32 s{sT1}, 0\ns_cbranch_scc1 K2_reg")
    a(f"v_cmp_eq_u32 vcc, 0, v{j}\nv_mov_b32 v{tmp}, 0x3f80\nv_mov_b32 v{tmp2}, 0x3f800000")
    a(f"v_cndmask_b32 v{eq0}, v{eq0}, v{ea}, vcc")
    for m in range(4):
        a(f"""
        v_cndmask_b32 v{Pre[0]+m}, v{Pre[0]+m}, v{tmp}, vcc
        v_cndmask_b32 v{Xo+m}, 0, v{tmp2}, vcc
        v_mov_b32 v{Pim[0]+m}, 0
        v_mov_b32 v{Qim[0]+m}, 0
        v_mov_b32 v{Pim[1]+m}, v{Pre[1]+m}
        v_mov_b32 v{Pre[1]+m}, 0
        v_mov_b32 v{Qim[1]+m}, v{Qre[1]+m}
        v_mov_b32 v{Qre[1]+m}, 0
        """)
    a("K2_reg:")
    a(f"s_mul_i32 s{t0}, s{sWave}, 8224\nv_add_u32 v{tmp}, s{t0}, v{sh}\ns_waitcnt lgkmcnt(0)\ns_barrier")
    fr = {}
    k = 0
    for ri in range(2):
        for RT in range(2):
            for st in range(2):
                fr[ri, RT, st] = raw[k]; k += 1
                a(f"ds_read_b128 {vr(fr[ri,RT,st],4)}, v{tmp} offset:{ri*4112 + RT*2048 + st*1024}")
    ac = {(X, ri, RT): V.get(4) for X in range(2) for ri in range(2) for RT in range(2)}
    a("s_waitcnt lgkmcnt(0)")
    for st in range(2):
        for ri in range(2):
            for RT in range(2):
                for X in range(2):
                    d = ac[X, ri, RT]
                    a(f"{MF} {vr(d,4)}, {vr(fr[ri,RT,st],4)}, {vr(CF[X][st],4)}, {vr(d,4) if st else 0}")
    pa = {(X, ri): V.get(4) for X in range(2) for ri in range(2)}
    for ri in range(2):
        for X in range(2):
            for RT in range(2):
                s = ac[X, ri, RT]; d = pa[X, ri] + 2*RT
                a(f"v_cvt_pk_bf16_f32 v{d}, v{s}, v{s+1}\nv_cvt_pk_bf16_f32 v{d+1}, v{s+2}, v{s+3}")
    Pq = {(X, tt): raw[2*X+tt] for X in range(2) for tt in range(2)}
    for tt in range(2):
        a(f"{MF} {vr(Pq[0,tt],4)}, {vr(pa[0,0],4)}, {vr(Pre[tt],4)}, 0")
        a(f"{MF} {vr(Pq[1,tt],4)}, {vr(pa[1,0],4)}, {vr(Qre[tt],4)}, 0")
    for tt in range(2):
        a(f"{MF} {vr(Pq[0,tt],4)}, {vr(pa[0,1],4)}, {vr(Pim[tt],4)}, {vr(Pq[0,tt],4)}")
        a(f"{MF} {vr(Pq[1,tt],4)}, {vr(pa[1,1],4)}, {vr(Qim[tt],4)}, {vr(Pq[1,tt],4)}")
    a(f"{MF} {vr(Pq[1,0],4)}, {vr(pa[0,0],4)}, {vr(Xo,4)}, {vr(Pq[1,0],4)}")
    a(f"""
    ds_write_b128 v{ea}, {vr(Pq[0,0],4)} offset:{EX}
    ds_write_b128 v{ea}, {vr(Pq[0,1],4)} offset:{EX+1024}
    ds_write_b128 v{eq1}, {vr(Pq[1,1],4)} offset:{EX+8192+1024}
    ds_write_b128 v{eq0}, {vr(Pq[1,0],4)} offset:{EX+8192}
    """)
    r1, r2 = V.get(), V.get()
    a(f"""
    v_lshrrev_b32 v{tmp}, 3, v{L}
    v_and_b32 v{tmp}, 3, v{tmp}
    v_xor_b32 v{tmp}, v{tmp}, v{L}
    v_lshlrev_b32 v{tmp}, 4, v{tmp}
    s_lshl_b32 s{t0}, s{sSig}, 10
    v_add_u32 v{ea}, s{t0}, v{tmp}
    s_cmp_eq_u32 s{sSig}, 0
    s_cselect_b32 s{t0}, s{sT1}, s{sTb1}
    v_lshrrev_b32 v{tmp}, 2, v{L}
    v_lshl_add_u32 v{r1}, v{tmp}, 6, s{t0}
    v_sub_u32 v{r2}, 2048, v{r1}
    v_mov_b32 v{tmp}, 1024
    v_cmp_eq_u32 vcc, 0, v{r1}
    v_cndmask_b32 v{r2}, v{r2}, v{tmp}, vcc
    v_and_b32 v{tmp}, 3, v{L}
    v_lshlrev_b32 v{tmp}, 4, v{tmp}
    v_mov_b32 v{tmp2}, 1792
    v_mad_u32_u24 v{r1}, v{r1}, v{tmp2}, v{tmp}
    v_mad_u32_u24 v{r2}, v{r2}, v{tmp2}, v{tmp}
    s_lshl_b32 s{t0}, s{sBeta}, 6
    s_mul_i32 s{t1}, s{sPar}, 448
    s_add_u32 s{t0}, s{t0}, s{t1}
    s_add_u32 s{t0}, s{t0}, 896
    s_cmp_eq_u32 s{sPar}, 0
    s_cselect_b32 s{sSgn}, 1.0, -1.0
    s_waitcnt lgkmcnt(0)
    s_barrier
    """)
    E = {}
    keys = [(q, pi, par) for q in range(2) for pi in range(2) for par in range(2)]
    regs = list(ac.values())
    for k, key in enumerate(keys):
        E[key] = regs[k]
        a(f"ds_read_b128 {vr(E[key],4)}, v{ea} offset:{EX + key[0]*8192 + key[1]*4096 + key[2]*2048}")
    a("s_waitcnt lgkmcnt(0)")
    for q in range(2):
        for pi in range(2):
            for r in range(4):
                a(f"v_fma_f32 v{E[q,pi,0]+r}, v{E[q,pi,1]+r}, s{sSgn}, v{E[q,pi,0]+r}")
    for pi in range(2):
        for r in range(4):
            a(f"v_add_f32 v{E[0,pi,1]+r}, v{E[0,pi,0]+r}, v{E[1,pi,0]+r}\nv_sub_f32 v{E[1,pi,1]+r}, v{E[0,pi,0]+r}, v{E[1,pi,0]+r}")
    for q in range(2):
        for r in range(4):
            a(f"v_cvt_pk_bf16_f32 v{raw[q]+r}, v{E[q,0,1]+r}, v{E[q,1,1]+r}")
        a(f"buffer_store_dwordx4 {vr(raw[q],4)}, v{r2 if q else r1}, s[{sOut}:{sOut+3}], s{t0} offen")
    a("s_endpgm")

def gen_k2():
    a = Asm(); V = Regs("v", 1, 256)
    a("""
    s_load_dwordx2 s[4:5], s[0:1], 16
    s_load_dwordx2 s[8:9], s[0:1], 64
    s_load_dwordx2 s[10:11], s[0:1], 80
    s_cmp_ge_u32 s2, 448
    s_cbranch_scc1 K2_end
    """)
    t = V.get()
    a(f"""
    v_lshrrev_b32 v{t}, 6, v0
    v_readfirstlane_b32 s3, v{t}
    s_and_b32 s24, s2, 7
    s_lshr_b32 s25, s2, 3
    s_mul_i32 s28, s25, 37
    s_lshr_b32 s28, s28, 8
    s_mul_i32 s29, s28, 7
    s_sub_u32 s27, s25, s29
    s_and_b32 s29, s28, 3
    s_lshl_b32 s26, s24, 2
    s_add_u32 s26, s26, s29
    s_cmp_ge_u32 s25, 28
    s_cbranch_scc1 K2_b2
    """)
    m = V.mark()
    gen_a2(a, V)
    a("K2_b2:")
    V.reset(m)
    gen_b2(a, V)
    a("K2_end:\ns_endpgm")
    return hazard_pass(a.text()), V.hi

def build(extra_k=(), extra_l_front=(), extra_l_back=()):
    k1, v1 = gen_k1(); k2, v2 = gen_k2()
    r8 = lambda x: -(-x // 8) * 8
    ks = [("k1_kernel", k1, r8(v1), 80, r8(v1)), ("k2_kernel", k2, r8(v2), 80, r8(v2))] + list(extra_k)
    ls = list(extra_l_front) + [("k1_kernel", 256, 256, 159744), ("k2_kernel", 448, 256, 66560)] + list(extra_l_back)
    txt = module(ks, ls, tail=".fill 4096, 4, 0xbf810000\n")
    txt = txt.replace(".text\n", ".text\n.p2align 12\n.fill 832, 4, 0xbf810000\n", 1)
    return txt

if __name__ == "__main__":
    out = sys.argv[1] if len(sys.argv) > 1 else os.path.join(HERE, "..", NAME + ".s")
    open(out, "w").write(build())
    assert all((i*37) >> 8 == i // 7 for i in range(56))
```

```python
import sys, os
HERE = os.path.dirname(os.path.abspath(__file__)); sys.path.insert(0, HERE)
from asmlib import *
import gen_v1
empty = ("e_kernel", "    s_endpgm\n", 8, 16, 8)
def chain(n, argoff, stride, label="c_kernel"):
    a = Asm()
    a(f"""
    s_cmp_ge_u32 s2, 1
    s_cbranch_scc1 {label}_end
    s_load_dwordx2 s[4:5], s[0:1], {argoff}
    v_mov_b32 v1, 0
    s_mov_b32 s8, 0
    s_waitcnt lgkmcnt(0)
    s_mov_b32 s6, 0x100000
    s_mov_b32 s7, 0x00020000
    {label}_l:
    buffer_load_dword v2, v1, s[4:7], 0 offen
    s_waitcnt vmcnt(0)
    v_and_b32 v2, 0, v2
    v_add_u32 v1, v1, v2
    v_add_u32 v1, {stride}, v1
    s_add_u32 s8, s8, 1
    s_cmp_lt_u32 s8, {n}
    s_cbranch_scc1 {label}_l
    {label}_end:
    s_endpgm
    """)
    return (label, a.text(), 8, 16, 8)
E = ("e_kernel", 256, 64, 0)
w = lambda n, s: open(os.path.join(HERE, "..", "var", n + ".s"), "w").write(s)
w("cal_base", gen_v1.build())
w("cal_eback", gen_v1.build([empty], [], [E]))
w("cal_efront", gen_v1.build([empty], [E], []))
w("cal_e4", gen_v1.build([empty], [], [E, E, E, E]))
w("cal_twice", gen_v1.build([], [("k1_kernel", 256, 256, 159744), ("k2_kernel", 448, 256, 66560)], []))
w("cal_chain", gen_v1.build([chain(100, 0, 4096+128)], [("c_kernel", 1, 64, 0)], []))
w("cal_chain_w", gen_v1.build([chain(100, 8, 4096+128)], [("c_kernel", 1, 64, 0)], []))
w("cal_chain_ws", gen_v1.build([chain(100, 80, 4096+128)], [("c_kernel", 1, 64, 0)], []))
w("cal_chain_out", gen_v1.build([chain(100, 64, 4096+128)], [("c_kernel", 1, 64, 0)], []))
w("cal_chain_dft", gen_v1.build([chain(100, 40, 4096+128)], [("c_kernel", 1, 64, 0)], []))
w("cal_chain_same", gen_v1.build([chain(100, 0, 0)], [("c_kernel", 1, 64, 0)], []))
```

```python
import sys, os, re
HERE = os.path.dirname(os.path.abspath(__file__)); sys.path.insert(0, HERE)
def stamp(txt, kernels):
    out = []
    cur = None
    for line in txt.split("\n"):
        m = re.match(r"^(\w+_kernel):", line)
        if m and m.group(1) in kernels:
            cur = kernels.index(m.group(1))
            out.append(line)
            out.append("    s_memrealtime s[90:91]\n    s_memtime s[92:93]\n    s_load_dwordx2 s[84:85], s[0:1], 80\n    s_mov_b32 s88, s2\n    v_lshrrev_b32 v1, 6, v0\n    s_nop 0\n    v_readfirstlane_b32 s89, v1")
            continue
        if line.strip() == "s_endpgm" and cur is not None:
            out.append(f"""    s_waitcnt vmcnt(0) lgkmcnt(0)
    s_memrealtime s[94:95]
    s_memtime s[96:97]
    s_mov_b32 s86, 0x10000000
    s_mov_b32 s87, 0x00020000
    s_lshl_b32 s88, s88, 4
    s_add_u32 s88, s88, s89
    s_lshl_b32 s88, s88, 4
    s_add_u32 s88, s88, {(128<<20) + (cur<<20)}
    s_mov_b64 exec, 1
    s_waitcnt lgkmcnt(0)
    v_mov_b32 v4, s90
    v_mov_b32 v5, s94
    v_mov_b32 v6, s92
    v_mov_b32 v7, s96
    v_mov_b32 v1, 0
    buffer_store_dwordx4 v[4:7], v1, s[84:87], s88 offen
    s_endpgm""")
            continue
        out.append(line)
    return re.sub(r"next_free_sgpr \d+", "next_free_sgpr 102", "\n".join(out))
if __name__ == "__main__":
    import gen_v1
    open(os.path.join(HERE, "..", "var", "v1_stamp.s"), "w").write(stamp(gen_v1.build(), ["k1_kernel", "k2_kernel"]))
```

```python
import sys, os
HERE = os.path.dirname(os.path.abspath(__file__)); sys.path.insert(0, HERE)
from asmlib import *
import gen_v1, gen_stamp
def spin(mult, offA, offB):
    a = Asm()
    a(f"""
    s_memrealtime s[10:11]
    s_cmp_ge_u32 s2, 1
    s_cbranch_scc1 sp_end
    s_load_dwordx2 s[4:5], s[0:1], 80
    s_waitcnt lgkmcnt(0)
    s_mov_b32 s6, 0x10000000
    s_mov_b32 s7, 0x00020000
    v_mov_b32 v1, {offA}
    v_mov_b32 v2, {offB if offB is not None else offA}
    buffer_load_dword v3, v1, s[4:7], 0 offen
    buffer_load_dword v4, v2, s[4:7], 0 offen
    s_waitcnt vmcnt(0)
    v_readfirstlane_b32 s12, v3
    v_readfirstlane_b32 s13, v4
    s_nop 4
    """)
    if offB is None: a("s_mov_b32 s13, s10")
    a(f"""
    s_sub_u32 s14, s13, s12
    s_max_i32 s14, s14, 0
    s_min_u32 s14, s14, 5000
    s_mul_i32 s14, s14, {mult}
    s_add_u32 s14, s14, s10
    sp_l:
    s_memrealtime s[16:17]
    s_waitcnt lgkmcnt(0)
    s_sub_u32 s15, s16, s14
    s_cmp_lt_i32 s15, 0
    s_cbranch_scc1 sp_l
    sp_end:
    s_endpgm
    """)
    return ("sp_kernel", a.text(), 8, 24, 8)
w = lambda n, s: open(os.path.join(HERE, "..", "var", n + ".s"), "w").write(s)
B = 128 << 20
def mk(n, mult, A, Bo):
    t = gen_v1.build([spin(mult, A, Bo)], [], [("sp_kernel", 1, 64, 0)])
    i = t.index(".globl sp_kernel")
    j = t.index(".section .rodata")
    t2 = gen_stamp.stamp(t[:i], ["k1_kernel", "k2_kernel"]) + "\n" + t[i:j] + t[j:].replace("next_free_sgpr 80", "next_free_sgpr 102")
    w(n, t2)
mk("c2_zero", 0, B, None)
mk("c2_total", 10, B, None)
mk("c2_k1wg0", 10, B, B + 4)
mk("c2_k2start", 10, B, B + (1 << 20))
mk("c2_skew4", 10, B, B + 4*256)
mk("c2_b1", 10, B + 200*256, B + 200*256 + 4)
```

```python
import sys, os, importlib, re
HERE = os.path.dirname(os.path.abspath(__file__)); sys.path.insert(0, HERE)
from asmlib import *
def probe(role, k, stat):
    a = Asm()
    cnt = {"H": 896, "C": 896, "S": 256, "W": 32, "A": 2048}[role]
    a(f"""
    s_memrealtime s[10:11]
    s_cmp_ge_u32 s2, 1
    s_cbranch_scc1 sp_end
    s_load_dwordx2 s[4:5], s[0:1], 80
    s_mov_b32 s6, 0x10000000
    s_mov_b32 s7, 0x00020000
    v_lshlrev_b32 v1, 7, v0
    s_mov_b32 s8, {128<<20}
    s_mov_b32 s9, 0
    v_mov_b32 v4, 0x7fffffff
    v_mov_b32 v5, 0
    v_mov_b32 v6, 0
    v_and_b32 v7, 7, v0
    s_waitcnt lgkmcnt(0)
    s_sub_u32 s12, s10, 100000
    sp_a:
    buffer_load_dword v2, v1, s[4:7], s8 offen
    buffer_load_dword v3, v1, s[4:7], s8 offen offset:{4*k}
    s_waitcnt vmcnt(0)
    v_subrev_u32 v2, s12, v2
    v_subrev_u32 v3, s12, v3
    v_min_u32 v4, v4, v2
    """)
    if role in "HC": a("s_cmp_lt_u32 s9, 28\ns_cselect_b64 s[14:15], -1, 0\n" + ("v_cmp_gt_u32 vcc, 4, v7" if role == "H" else "v_cmp_le_u32 vcc, 4, v7") + "\ns_nop 1\ns_and_b64 vcc, vcc, s[14:15]")
    elif role == "S": a("s_cmp_ge_u32 s9, 28\ns_cselect_b64 vcc, -1, 0")
    elif role == "W": a("s_cmp_ge_u32 s9, 28\ns_cselect_b64 s[14:15], -1, 0\nv_cmp_eq_u32 vcc, 1, v7\ns_nop 1\ns_and_b64 vcc, vcc, s[14:15]")
    else: a("s_mov_b64 vcc, -1")
    a(f"""
    v_cndmask_b32 v3, 0, v3, vcc
    v_max_u32 v5, v5, v3
    v_add_u32 v6, v6, v3
    s_add_u32 s8, s8, 8192
    s_add_u32 s9, s9, 1
    s_cmp_lt_u32 s9, 32
    s_cbranch_scc1 sp_a
    s_mov_b32 s16, 0x7fffffff
    s_mov_b32 s17, 0
    s_mov_b32 s18, 0
    """)
    for l in range(64):
        a(f"v_readlane_b32 s20, v4, {l}\nv_readlane_b32 s21, v5, {l}\nv_readlane_b32 s22, v6, {l}\ns_nop 1\ns_min_u32 s16, s16, s20\ns_max_u32 s17, s17, s21\ns_add_u32 s18, s18, s22")
    if stat == "max": a("s_sub_u32 s14, s17, s16\ns_mul_i32 s14, s14, 10")
    elif stat == "mean":
        a(f"s_mul_i32 s20, s16, {cnt}\ns_sub_u32 s14, s18, s20\ns_mul_i32 s14, s14, 10\ns_mul_hi_u32 s14, s14, {(1<<32)//cnt + 1}")
    else: a("s_mov_b32 s14, 0")
    a(f"""
    s_min_u32 s14, s14, 30000
    s_add_u32 s14, s14, 3000
    s_add_u32 s14, s14, s10
    sp_l:
    s_memrealtime s[16:17]
    s_waitcnt lgkmcnt(0)
    s_sub_u32 s15, s16, s14
    s_cmp_lt_i32 s15, 0
    s_cbranch_scc1 sp_l
    sp_end:
    s_endpgm
    """)
    return a.text()
if __name__ == "__main__":
    gen = importlib.import_module(sys.argv[1])
    txt = gen.make(**eval("dict(" + sys.argv[2] + ")"))
    for spec in sys.argv[3:]:
        name, role, k, stat = spec.split(":")
        t = re.sub(r"; @launch grid=(\S+) block=(\S+) lds=(\d+)", lambda m: f"; @launch kernel={NAME}_kernel grid={m.group(1)} block={m.group(2)} lds={m.group(3)}\n; @launch kernel=sp_kernel grid=(1,1,1) block=(64,1,1) lds=0", txt)
        t = t.replace('.section .rodata,"a"\n', kernel_text("sp_kernel", probe(role, int(k), stat)) + '.section .rodata,"a"\n' + descriptor("sp_kernel", 8, 32, 8))
        open(os.path.join(HERE, "..", "var", name + ".s"), "w").write(t)
```
